```python
import torch

def _softmax(x, axis=-1):
    return torch.softmax(x, dim=axis)
def _gelu(x):
    return torch.nn.functional.gelu(x, approximate="tanh")
def _silu(x):
    return torch.nn.functional.silu(x)
def _sigmoid(x):
    return torch.sigmoid(x)
def _layernorm(x, axis=-1, eps=1e-5):
    m = x.mean(dim=axis, keepdim=True)
    v = x.var(dim=axis, keepdim=True, unbiased=False)
    return (x - m) / torch.sqrt(v + eps)
def _scatter_add(tgt, idx, src, axis=0):
    return tgt.clone().index_add_(axis, idx, src)
def _segment_sum(src, seg, n):
    out = torch.zeros((n,) + src.shape[1:], dtype=src.dtype)
    return out.index_add_(0, seg, src)
def _pad(x, pw):
    flat = tuple(v for pair in reversed(pw) for v in pair)
    return torch.nn.functional.pad(x, flat)

kernel_name = 'gated_mix__mha_block__glu_gated_geglu__prompt'

def setup_inputs():

    _w = (lambda a: (lambda t: t.to(torch.bfloat16) if t.is_floating_point() else t)(torch.as_tensor(a)))
    def _A_setup():
        B, S, D, H = 1, 2048, 512, 32
        return {
            "x": _w((lambda *s: torch.randn(*s, dtype=torch.bfloat16) * 0.05)(B, S, D)),
            "wqkv": _w((lambda *s: torch.randn(*s, dtype=torch.bfloat16) * 0.8)(D, 3 * D)),
            "wo": _w((lambda *s: torch.randn(*s, dtype=torch.bfloat16) * 0.05)(D, D)),
        }
    _A_in = _A_setup()

    def _B_setup():
        B, S, Dm, Df = 1, 2048, 512, 1792
        return {
            "x": _w((lambda *s: torch.randn(*s, dtype=torch.bfloat16) * 0.05)(B, S, Dm)),
            "w_gate": _w((lambda *s: torch.randn(*s, dtype=torch.bfloat16) * 3.2)(Dm, Df) * (Dm ** -0.5)),
            "w_up": _w((lambda *s: torch.randn(*s, dtype=torch.bfloat16) * 3.2)(Dm, Df) * (Dm ** -0.5)),
            "w_down": _w((lambda *s: torch.randn(*s, dtype=torch.bfloat16) * 3.2)(Df, Dm) * (Df ** -0.5)),
        }
    _B_in = _B_setup()

    return {
        "A_x": _A_in["x"],
        "A_wqkv": _A_in["wqkv"],
        "A_wo": _A_in["wo"],
        "B_x": _B_in["x"],
        "B_w_gate": _B_in["w_gate"],
        "B_w_up": _B_in["w_up"],
        "B_w_down": _B_in["w_down"],
        "gate_w": _w((lambda *s: torch.randn(*s, dtype=torch.bfloat16) * 0.05)(512) * 16.0),
    }

def reference(A_x, A_wqkv, A_wo, B_x, B_w_gate, B_w_up, B_w_down, gate_w):
    def _A_ref(x, wqkv, wo):
        B, S, D = x.shape
        H = 32
        Dh = D // H
        qkv = (lambda x, *d: x.permute(*d))((x @ wqkv).reshape(B, S, 3, H, Dh), 2, 0, 3, 1, 4)
        q, k, v = qkv[0], qkv[1], qkv[2]
        scores = torch.einsum("bhqd,bhkd->bhqk", q, k) * (Dh ** -0.5)
        p = _softmax(scores, axis=-1)
        o = torch.einsum("bhqk,bhkd->bhqd", p, v)
        return (lambda x, *d: x.permute(*d))(o, 0, 2, 1, 3).reshape(B, S, D) @ wo

    def _B_ref(x, w_gate, w_up, w_down):
        g = torch.einsum("bsd,df->bsf", x, w_gate)
        u = torch.einsum("bsd,df->bsf", x, w_up)
        h = _gelu(g) * u
        return torch.einsum("bsf,fd->bsd", h, w_down)

    x = A_x
    g = _sigmoid((x * gate_w).sum(-1, keepdims=True))
    a = _A_ref(x, A_wqkv, A_wo)
    b = _B_ref(x, B_w_gate, B_w_up, B_w_down)
    return g * a + (1 - g) * b
```

```python
import re

TRANS = ("v_exp_f32", "v_log_f32", "v_rcp_f32", "v_rsq_f32", "v_sqrt_f32", "v_sin_f32", "v_cos_f32", "v_exp_f16", "v_rcp_f16")

def parse_regs(tok):
    tok = tok.strip()
    tok = tok.replace("abs(", "").replace(")", "").lstrip("-").strip("|")
    m = re.fullmatch(r"([vsa])(\d+)", tok)
    if m:
        return {(m.group(1), int(m.group(2)))}
    m = re.fullmatch(r"([vsa])\[(\d+):(\d+)\]", tok)
    if m:
        return {(m.group(1), i) for i in range(int(m.group(2)), int(m.group(3)) + 1)}
    if tok in ("vcc", "vcc_lo", "vcc_hi"):
        return {("x", "vcc")}
    if tok in ("exec", "exec_lo", "exec_hi"):
        return {("x", "exec")}
    if tok == "m0":
        return {("x", "m0")}
    return set()

def split_ops(s):
    out, depth, cur = [], 0, ""
    for ch in s:
        if ch in "[(":
            depth += 1
        if ch in "])":
            depth -= 1
        if ch == "," and depth == 0:
            out.append(cur.strip()); cur = ""
        else:
            cur += ch
    if cur.strip():
        out.append(cur.strip())
    return out

class Ins:
    def __init__(self, text):
        self.text = text
        t = text.split(";")[0].strip()
        parts = t.split(None, 1)
        self.op = parts[0]
        rest = parts[1] if len(parts) > 1 else ""
        ops = split_ops(rest)
        self.mods = ""
        if ops:
            last = ops[-1].split(None, 1)
            ops[-1] = last[0]
            self.mods = last[1] if len(last) > 1 else ""
        self.ops = ops
        op = self.op
        self.kind = "other"
        self.w = set(); self.r = set()
        self.srcA = set(); self.srcB = set(); self.srcC = set()
        self.passes = 0
        self.ws = 1
        R = [parse_regs(o) for o in ops]
        if op == "s_nop":
            self.kind = "nop"; self.ws = int(ops[0], 0) + 1
        elif op.startswith("v_mfma"):
            self.kind = "mfma"
            self.w = R[0]; self.srcA = R[1]; self.srcB = R[2]; self.srcC = R[3]
            self.r = R[1] | R[2] | R[3]
            self.passes = 8 if "32x32x16" in op else 4
            assert "32x32x16" in op or "16x16x32" in op
        elif op.startswith("v_"):
            self.kind = "valu"
            if op.startswith("v_cmp"):
                self.w = R[0]; self.r = set().union(*R[1:])
                if op.startswith("v_cmpx"):
                    self.w = self.w | {("x", "exec")}
            elif op.startswith(("v_add_co", "v_sub_co", "v_addc_co", "v_subb_co", "v_subrev_co")):
                self.w = R[0] | R[1]; self.r = set().union(*R[2:])
            elif op.startswith("v_permlane") and "swap" in op:
                self.w = R[0] | R[1]; self.r = R[0] | R[1]
            elif op.startswith(("v_fmac", "v_dot2c", "v_pk_fmac", "v_writelane")) or "UNUSED_PRESERVE" in self.mods:
                self.w = R[0]; self.r = set().union(*R)
            elif op == "v_nop":
                pass
            else:
                self.w = R[0]; self.r = set().union(*R[1:]) if len(R) > 1 else set()
                if op.startswith("v_cndmask") and len(R) == 3:
                    self.r |= {("x", "vcc")}
        elif op.startswith("ds_"):
            self.kind = "ds"
            if op.startswith(("ds_read", "ds_bpermute", "ds_permute", "ds_swizzle")) or "_rtn" in op:
                self.w = R[0]; self.r = set().union(*R[1:])
            else:
                self.r = set().union(*R)
        elif op.startswith(("buffer_", "global_")):
            self.kind = "vmem"
            mods = self.mods.split()
            self.lds = "lds" in mods or "_lds_" in op
            if op in ("buffer_wbl2", "buffer_inv"):
                pass
            elif "load" in op and not self.lds:
                self.w = R[0]; self.r = set().union(*R[1:])
            elif "atomic" in op and "sc0" in mods and op.startswith("global_"):
                self.w = R[0]; self.r = set().union(*R[1:])
            elif "atomic" in op and "sc0" in mods:
                self.w = R[0]; self.r = set().union(*R)
            else:
                self.r = set().union(*R) if R else set()
            if self.lds:
                self.r |= {("x", "m0")}
            self.widestore = ("store" in op and ("x4" in op or "x3" in op))
            if self.widestore:
                self.sdata = R[0] if op.startswith("buffer_") else R[1]
        elif op.startswith("s_"):
            self.kind = "salu"
            if op.startswith(("s_cmp", "s_cbranch", "s_branch", "s_waitcnt", "s_barrier", "s_endpgm", "s_sleep", "s_setprio", "s_bitcmp")):
                self.r = set().union(*R) if R else set()
            elif "saveexec" in op:
                self.w = R[0] | {("x", "exec")}; self.r = R[1] | {("x", "exec")}
            else:
                self.w = R[0] if R else set(); self.r = set().union(*R[1:]) if len(R) > 1 else set()
        self.trans = op.replace("_e32", "").replace("_e64", "") in TRANS
        self.dot = op.startswith("v_dot")
        self.dpp = any(k in self.mods for k in ("row_", "quad_perm", "wave_", "row_bcast"))
        self.sdwa = "sdwa" in op or "op_sel" in self.mods

def vset(s): return {x for x in s if x[0] in "va"}
def sset(s): return {x for x in s if x[0] == "s" or x == ("x", "vcc")}

def required(p, c):
    n = 0
    if p.kind == "valu":
        pw = vset(p.w)
        if c.kind == "mfma" and pw & c.r: n = max(n, 2)
        if c.kind == "valu":
            if p.trans and not c.trans and pw & c.r: n = max(n, 1)
            if c.op.startswith(("v_readfirstlane", "v_readlane")) and pw & c.r: n = max(n, 1)
            if c.op.startswith("v_permlane") and pw & c.r: n = max(n, 2)
            if c.dpp and pw & c.r: n = max(n, 2)
            if p.sdwa and pw & (c.r | c.w): n = max(n, 1)
            if p.dot and p.op != c.op and pw & (c.r | c.w): n = max(n, 3)
            sw = sset(p.w)
            if sw & c.r:
                n = max(n, 4 if c.op.startswith(("v_readlane", "v_writelane", "v_div_fmas")) else 2)
            if ("x", "exec") in p.w:
                if c.op.startswith(("v_readlane", "v_readfirstlane", "v_writelane", "v_permlane")): n = max(n, 4)
                if c.dpp: n = max(n, 5)
                if ("x", "exec") in c.r: n = max(n, 2)
        if p.dot and c.kind in ("vmem", "ds", "mfma") and pw & c.r: n = max(n, 3)
        if c.kind == "vmem" and sset(p.w) & c.r: n = max(n, 5)
        if c.kind == "mfma" and ("x", "exec") in p.w: n = max(n, 4)
        if c.kind == "salu" and sset(p.w) & c.r: n = max(n, 1)
    if p.kind == "mfma":
        big = p.passes == 8
        if c.kind == "mfma":
            if p.w & (c.srcA | c.srcB): n = max(n, 12 if big else 8)
            if p.w & c.srcC:
                if not (p.w == c.srcC and p.passes == c.passes): n = max(n, 10 if big else 6)
            if p.w & c.w and not (p.w == c.w): n = max(n, 12 if big else 8)
        elif c.kind in ("valu", "vmem", "ds"):
            if p.w & (c.r | c.w): n = max(n, 12 if big else 8)
            if c.kind == "valu" and p.srcC & c.w: n = max(n, 7 if big else 3)
    if p.kind == "salu":
        if ("x", "m0") in p.w and c.kind == "vmem" and ("x", "m0") in c.r: n = max(n, 1)
    if p.kind == "vmem" and getattr(p, "widestore", False):
        if p.sdata & c.w: n = max(n, 2 if c.kind in ("valu", "mfma") else 1)
    return n

class Asm:
    def __init__(self):
        self.lines = []
        self.hist = []
        self.nops = 0
        self.count = 0
    def raw(self, s):
        self.lines.append(s)
    def comment(self, s):
        self.lines.append("    ; " + s)
    def label(self, name, fence=True):
        self.lines.append(name + ":")
    def fence(self):
        need = 0
        d = 0
        for p in reversed(self.hist):
            if p.kind == "mfma": need = max(need, (12 if p.passes == 8 else 8) - d)
            elif p.kind == "valu": need = max(need, 5 - d)
            elif p.kind in ("salu", "vmem"): need = max(need, 2 - d)
            d += p.ws
            if d > 20: break
        if need > 0:
            self._nop(need)
    def _nop(self, n):
        while n > 0:
            k = min(n, 16)
            i = Ins(f"s_nop {k-1}")
            self.lines.append("    " + i.text)
            self.hist.append(i)
            self.nops += k
            n -= k
    def __call__(self, text):
        for t in text.split("\n"):
            t = t.strip()
            if not t or t.startswith(";"):
                continue
            self.emit(t)
    def emit(self, text):
        c = Ins(text)
        need = 0
        d = 0
        for p in reversed(self.hist):
            need = max(need, required(p, c) - d)
            d += p.ws
            if d > 20: break
        if need > 0:
            self._nop(need)
        self.lines.append("    " + text)
        self.hist.append(c)
        self.count += 1
        if len(self.hist) > 64:
            self.hist = self.hist[-40:]
    def text(self):
        return "\n".join(self.lines) + "\n"

def vr(a, n=1):
    return f"v{a}" if n == 1 else f"v[{a}:{a+n-1}]"
def sr(a, n=1):
    return f"s{a}" if n == 1 else f"s[{a}:{a+n-1}]"
def ar(a, n=1):
    return f"a{a}" if n == 1 else f"a[{a}:{a+n-1}]"
```

```python
import sys, math
from asmlib import *

NAME = "gated_mix__mha_block__glu_gated_geglu__prompt"
QF = 0
KF = 2 << 20
VF = 4 << 20
A2 = 6 << 20
GO = 16 << 20
WS_BYTES = 17 << 20
LOG2E = 1.4426950408889634
import struct
def f2u(f): return struct.unpack("<I", struct.pack("<f", f))[0]

class Cnt:
    def __init__(self, a, name, maxv):
        self.a = a; self.name = name; self.maxv = maxv
        self.q = []
        self.done = 0
    def issue(self, tag):
        self.q.append(tag)
    def wait(self, tags):
        if not isinstance(tags, (list, set)): tags = [tags]
        idx = max(i for i, t in enumerate(self.q) if t in tags)
        for t in tags: assert t in self.q, t
        if idx < self.done: return
        n = len(self.q) - 1 - idx
        n = min(n, self.maxv)
        self.a(f"s_waitcnt {self.name}({n})")
        self.done = len(self.q) - n
    def wait_all(self):
        self.a(f"s_waitcnt {self.name}(0)")
        self.done = len(self.q)
    def outstanding(self):
        return len(self.q) - self.done

def srd(a, d, base, nbytes):
    a(f"s_mov_b32 s{d}, s{base}")
    a(f"s_and_b32 s{d+1}, s{base+1}, 0xffff")
    a(f"s_mov_b32 s{d+2}, {nbytes}")
    a(f"s_mov_b32 s{d+3}, 0x20000")

def kernel_begin(a, name):
    a.raw(f".globl {name}\n.p2align 8\n.type {name},@function\n{name}:")
    a.hist = []

def descriptor(name, vgpr, sgpr=96, accum=None):
    if accum is None: accum = (vgpr + 3)//4*4
    return f""".amdhsa_kernel {name}
  .amdhsa_next_free_vgpr {vgpr}
  .amdhsa_next_free_sgpr {sgpr}
  .amdhsa_accum_offset {accum}
  .amdhsa_group_segment_fixed_size 0
  .amdhsa_kernarg_size 88
  .amdhsa_user_sgpr_count 2
  .amdhsa_user_sgpr_kernarg_segment_ptr 1
  .amdhsa_system_sgpr_workgroup_id_x 1
.end_amdhsa_kernel
"""

def k1(a):
    name = "p1_kernel"
    kernel_begin(a, name)
    SX, SE, SO, SQ, SW, SG = 16, 20, 24, 28, 32, 36
    sW, sTB, sCG, sT, sTT, sCH = 40, 41, 42, 43, 44, 45
    sOff = [46, 47, 48, 49, 50]
    sXo = 51
    sStep = 52
    sM0w = 53
    sT0, sT1, sT2 = 54, 55, 56
    XB, GB, WB, NW = 0, 49152, 50176, 13
    vL = 1
    vXo, vWo03, vWo4, vGo = 2, 3, 4, 5
    vXa = [6, 7, 8, 9]
    vWa = [10, 11]
    vGa = 12
    vZ = 13
    vT = [14, 15, 16, 17, 18, 19, 20, 21, 22, 23]
    vXf = [24, 40]
    vGf = 56
    vWf = [72, 88]
    vAcc = 104
    a("s_cmp_ge_u32 s2, 256")
    a("s_cbranch_scc1 p1_end")
    a("s_load_dwordx4 s[4:7], s[0:1], 0")
    a("s_load_dwordx4 s[8:11], s[0:1], 32")
    a("s_load_dwordx2 s[12:13], s[0:1], 56")
    a("s_load_dwordx2 s[14:15], s[0:1], 80")
    a(f"v_lshrrev_b32 v{vT[0]}, 6, v0")
    a(f"v_and_b32 v{vL}, 63, v0")
    a(f"v_readfirstlane_b32 s{sW}, v{vT[0]}")
    a(f"s_and_b32 s{sT0}, s2, 1")
    a(f"s_lshl_b32 s{sT0}, s{sT0}, 3")
    a(f"s_lshr_b32 s{sT1}, s2, 3")
    a(f"s_and_b32 s{sT2}, s{sT1}, 7")
    a(f"s_add_u32 s{sTB}, s{sT0}, s{sT2}")
    a(f"s_and_b32 s{sT0}, s2, 6")
    a(f"s_lshl_b32 s{sT0}, s{sT0}, 1")
    a(f"s_lshr_b32 s{sT1}, s{sT1}, 3")
    a(f"s_add_u32 s{sCG}, s{sT0}, s{sT1}")
    a(f"s_and_b32 s{sTT}, s{sW}, 3")
    a(f"s_lshr_b32 s{sCH}, s{sW}, 2")
    a(f"s_lshl_b32 s{sM0w}, s{sW}, 10")
    a(f"v_lshrrev_b32 v{vT[0]}, 3, v{vL}")
    a(f"s_lshl_b32 s{sT0}, s{sW}, 3")
    a(f"v_add_u32 v{vT[0]}, s{sT0}, v{vT[0]}")
    a(f"v_and_b32 v{vT[1]}, 7, v{vL}")
    a(f"v_lshrrev_b32 v{vT[2]}, 2, v{vL}")
    a(f"v_and_b32 v{vT[2]}, 4, v{vT[2]}")
    a(f"v_xor_b32 v{vT[2]}, v{vT[1]}, v{vT[2]}")
    a(f"v_lshlrev_b32 v{vT[2]}, 4, v{vT[2]}")
    a(f"v_lshrrev_b32 v{vT[3]}, 1, v{vT[0]}")
    a(f"v_and_b32 v{vT[3]}, 7, v{vT[3]}")
    a(f"v_xor_b32 v{vT[3]}, v{vT[1]}, v{vT[3]}")
    a(f"v_lshlrev_b32 v{vT[3]}, 4, v{vT[3]}")
    a(f"v_lshlrev_b32 v{vXo}, 10, v{vT[0]}")
    a(f"v_add_u32 v{vXo}, v{vXo}, v{vT[3]}")
    a(f"v_mul_u32_u24 v{vWo4}, 3072, v{vT[0]}")
    a(f"v_add_u32 v{vWo4}, v{vWo4}, v{vT[2]}")
    a(f"s_cmp_ge_u32 s{sCG}, 14")
    a(f"s_cselect_b32 s{sT}, 1, 0")
    a(f"s_cselect_b32 s{sT0}, 48, 56")
    a(f"s_lshl_b32 s{sT0}, s{sT0}, 6")
    a(f"s_lshl_b32 s{sStep}, s{sT0}, 6")
    a(f"v_mul_u32_u24 v{vWo03}, s{sT0}, v{vT[0]}")
    a(f"v_add_u32 v{vWo03}, v{vWo03}, v{vT[2]}")
    a(f"v_lshlrev_b32 v{vGo}, 4, v{vL}")
    a(f"s_lshl_b32 s{sOff[4]}, s{sCG}, 7")
    a(f"s_lshl_b32 s{sT0}, s{sCG}, 8")
    a(f"s_lshl_b32 s{sT1}, s{sCG}, 9")
    a(f"s_sub_u32 s{sT1}, s{sT1}, {14*512 - 2048}")
    a(f"s_cmp_eq_u32 s{sT}, 1")
    a(f"s_cselect_b32 s{sOff[0]}, s{sT1}, s{sT0}")
    a(f"s_cselect_b32 s{sT2}, 128, 0")
    a(f"s_add_u32 s{sOff[1]}, s{sOff[0]}, s{sT2}")
    a(f"s_add_u32 s{sOff[2]}, s{sOff[1]}, 128")
    a(f"s_add_u32 s{sOff[3]}, s{sOff[2]}, s{sT2}")
    a(f"s_lshl_b32 s{sXo}, s{sTB}, 17")
    a("s_waitcnt lgkmcnt(0)")
    srd(a, SX, 4, 2048*1024)
    srd(a, SQ, 6, 512*3072)
    srd(a, SW, 14, WS_BYTES)
    srd(a, SG, 12, 1024)
    a(f"s_cmp_eq_u32 s{sT}, 1")
    a(f"s_cselect_b32 s{SE}, s6, s8")
    a(f"s_cselect_b32 s{SE+1}, s7, s9")
    a(f"s_cselect_b32 s{SO}, s6, s10")
    a(f"s_cselect_b32 s{SO+1}, s7, s11")
    a(f"s_lshl_b32 s{SE+2}, s{sStep}, 3")
    a(f"s_mov_b32 s{SO+2}, s{SE+2}")
    a(f"s_and_b32 s{SE+1}, s{SE+1}, 0xffff")
    a(f"s_and_b32 s{SO+1}, s{SO+1}, 0xffff")
    a(f"s_mov_b32 s{SE+3}, 0x20000")
    a(f"s_mov_b32 s{SO+3}, 0x20000")

    vm = Cnt(a, "vmcnt", 63)
    def dma_x(c):
        for half in range(2):
            a(f"s_add_u32 m0, s{sM0w}, {XB + (c%3)*16384 + half*8192}")
            if half == 0:
                a(f"buffer_load_dwordx4 v{vXo}, s[{SX}:{SX+3}], s{sXo} offen lds")
            else:
                a(f"s_add_u32 s{sT0}, s{sXo}, 65536")
                a(f"buffer_load_dwordx4 v{vXo}, s[{SX}:{SX+3}], s{sT0} offen lds")
                a(f"s_add_u32 s{sXo}, s{sXo}, 128")
            vm.issue(("X", c, half))
    def dma_w(n):
        c, u = divmod(n, 5)
        a(f"s_add_u32 m0, s{sM0w}, {WB + (n % NW)*8192}")
        S = SQ if u == 4 else (SE if u % 2 == 0 else SO)
        vo = vWo4 if u == 4 else vWo03
        a(f"buffer_load_dwordx4 v{vo}, s[{S}:{S+3}], s{sOff[u]} offen lds")
        if u == 4:
            a(f"s_add_u32 s{sOff[u]}, s{sOff[u]}, {64*3072}")
        else:
            a(f"s_add_u32 s{sOff[u]}, s{sOff[u]}, s{sStep}")
        vm.issue(("W", n))
    a(f"s_mov_b32 m0, {GB}")
    a(f"buffer_load_dwordx4 v{vGo}, s[{SG}:{SG+3}], 0 offen lds")
    vm.issue("G")
    dma_x(0)
    for n in range(5): dma_w(n)
    dma_x(1)
    for n in range(5, 10): dma_w(n)
    dma_x(2)
    for n in range(10, 13): dma_w(n)
    a(f"v_and_b32 v{vT[0]}, 31, v{vL}")
    a(f"v_lshrrev_b32 v{vT[1]}, 5, v{vL}")
    a(f"v_lshrrev_b32 v{vT[2]}, 1, v{vT[0]}")
    a(f"v_and_b32 v{vT[2]}, 7, v{vT[2]}")
    a(f"v_xor_b32 v{vT[2]}, v{vT[2]}, v{vT[1]}")
    a(f"v_lshlrev_b32 v{vT[2]}, 4, v{vT[2]}")
    a(f"s_lshl_b32 s{sT0}, s{sTT}, 5")
    a(f"v_add_u32 v{vT[0]}, s{sT0}, v{vT[0]}")
    a(f"v_lshlrev_b32 v{vT[0]}, 7, v{vT[0]}")
    a(f"v_add_u32 v{vXa[0]}, v{vT[0]}, v{vT[2]}")
    for s in range(1, 4):
        a(f"v_xor_b32 v{vXa[s]}, {32*s}, v{vXa[0]}")
    a(f"v_lshlrev_b32 v{vGa}, 4, v{vT[1]}")
    a(f"v_lshlrev_b32 v{vT[2]}, 10, v{vT[1]}")
    a(f"v_bfe_u32 v{vT[3]}, v{vL}, 2, 2")
    a(f"v_lshlrev_b32 v{vT[3]}, 7, v{vT[3]}")
    a(f"v_add_u32 v{vT[2]}, v{vT[2]}, v{vT[3]}")
    a(f"v_bfe_u32 v{vT[3]}, v{vL}, 3, 1")
    a(f"v_xor_b32 v{vT[3]}, s{sCH}, v{vT[3]}")
    a(f"v_lshlrev_b32 v{vT[3]}, 6, v{vT[3]}")
    a(f"v_add_u32 v{vT[2]}, v{vT[2]}, v{vT[3]}")
    a(f"v_bfe_u32 v{vT[3]}, v{vL}, 4, 1")
    a(f"v_lshlrev_b32 v{vT[3]}, 5, v{vT[3]}")
    a(f"v_add_u32 v{vT[2]}, v{vT[2]}, v{vT[3]}")
    a(f"v_and_b32 v{vT[3]}, 3, v{vL}")
    a(f"v_lshlrev_b32 v{vT[3]}, 3, v{vT[3]}")
    a(f"v_add_u32 v{vT[2]}, v{vT[2]}, v{vT[3]}")
    a(f"v_add_u32 v{vWa[0]}, {WB}, v{vT[2]}")
    a(f"v_add_u32 v{vWa[1]}, {WB + 7*8192}, v{vT[2]}")
    a(f"v_mov_b32 v{vZ}, 0")
    a(f"s_cmp_eq_u32 s{sT}, 1")
    a("s_cbranch_scc1 p1_typeB")

    import copy
    def mainloop(typeB):
        vmc = copy.deepcopy(vm); vmc.a = a
        lg = Cnt(a, "lgkmcnt", 15)
        nonlocal_vm = vmc
        def dx(c):
            for half in range(2):
                a(f"s_add_u32 m0, s{sM0w}, {XB + (c%3)*16384 + half*8192}")
                if half == 0:
                    a(f"buffer_load_dwordx4 v{vXo}, s[{SX}:{SX+3}], s{sXo} offen lds")
                else:
                    a(f"s_add_u32 s{sT0}, s{sXo}, 65536")
                    a(f"buffer_load_dwordx4 v{vXo}, s[{SX}:{SX+3}], s{sT0} offen lds")
                    a(f"s_add_u32 s{sXo}, s{sXo}, 128")
                vmc.issue(("X", c, half))
        def dw(n):
            c, u = divmod(n, 5)
            a(f"s_add_u32 m0, s{sM0w}, {WB + (n % NW)*8192}")
            S = SQ if u == 4 else (SE if u % 2 == 0 else SO)
            vo = vWo4 if u == 4 else vWo03
            a(f"buffer_load_dwordx4 v{vo}, s[{S}:{S+3}], s{sOff[u]} offen lds")
            if u == 4:
                a(f"s_add_u32 s{sOff[u]}, s{sOff[u]}, {64*3072}")
            else:
                a(f"s_add_u32 s{sOff[u]}, s{sOff[u]}, s{sStep}")
            vmc.issue(("W", n))
        def rd_w(n, s):
            slot = n % NW
            va = vWa[slot // 7]
            off = (slot % 7)*8192 + s*2048
            d = vWf[n % 2] + 4*s
            a(f"ds_read_b64_tr_b16 v[{d}:{d+1}], v{va} offset:{off}")
            a(f"ds_read_b64_tr_b16 v[{d+2}:{d+3}], v{va} offset:{off+512}")
            lg.issue(("w", n, s, 0)); lg.issue(("w", n, s))
        def rd_x(c, s):
            d = vXf[c % 2] + 4*s
            a(f"ds_read_b128 v[{d}:{d+3}], v{vXa[s]} offset:{XB + (c%3)*16384}")
            lg.issue(("x", c, s))
        def rd_g(c, s):
            d = vGf + 4*s
            a(f"ds_read_b128 v[{d}:{d+3}], v{vGa} offset:{GB + (4*c+s)*32}")
            lg.issue(("g", c, s))
        def group_items(q):
            c = q // 2
            return [5*c, 5*c+1] if q % 2 == 0 else [5*c+2, 5*c+3, 5*c+4]
        def needs(q):
            if q > 15: return []
            t = [("W", n) for n in group_items(q)]
            if q % 2 == 0:
                t += [("X", q//2, 0), ("X", q//2, 1)]
            return t
        next_w = 13; next_x = 3
        for q in range(16):
            c = q // 2
            tags = needs(q) + needs(q+1) + (["G"] if q == 0 else [])
            vmc.wait(tags)
            a("s_barrier")
            pend = []
            if q > 0:
                for n in group_items(q-1):
                    if next_w < 40 and next_w - NW <= n:
                        pend.append(("w", next_w)); next_w += 1
                if (q-1) % 2 == 0 and next_x < 8:
                    pend.append(("x", next_x)); next_x += 1
            def pos(p): return (p[1]*5 - 0.5) if p[0] == "x" else p[1]
            pend.sort(key=pos)
            if q == 0:
                for s in range(4): rd_x(0, s)
                for s in range(4): rd_w(0, s)
                for s in range(4): rd_g(0, s)
            extra = []
            if q % 2 == 1 and c < 7:
                for s in range(4):
                    extra.append(("x", c+1, s))
                for s in range(4):
                    extra.append(("g", c+1, s))
            dots = []
            if q % 2 == 0:
                dots = [(s, j) for s in range(4) for j in range(4)]
            items = group_items(q)
            for n in items:
                u = n % 5
                for s in range(4):
                    lg.wait([("w", n, s), ("x", c, s)])
                    acc = vAcc + 16*u
                    wf = vWf[n % 2] + 4*s
                    xf = vXf[c % 2] + 4*s
                    A_, B_ = (xf, wf) if (typeB and u < 4) else (wf, xf)
                    cin = "0" if (c == 0 and s == 0) else f"v[{acc}:{acc+15}]"
                    a(f"v_mfma_f32_32x32x16_bf16 v[{acc}:{acc+15}], v[{A_}:{A_+3}], v[{B_}:{B_+3}], {cin}")
                    if pend:
                        p = pend.pop(0)
                        dw(p[1]) if p[0] == "w" else dx(p[1])
                    if n + 1 < 40:
                        rd_w(n+1, s)
                    if extra and n != items[0]:
                        e = extra.pop(0)
                        rd_x(e[1], e[2]) if e[0] == "x" else rd_g(e[1], e[2])
                    for _ in range(2):
                        if dots:
                            s2, j = dots.pop(0)
                            lg.wait([("g", c, s2), ("x", c, s2)])
                            a(f"v_dot2c_f32_bf16 v{vZ}, v{vXf[c%2]+4*s2+j}, v{vGf+4*s2+j}")
            assert not pend and not extra and not dots
        assert next_w == 40 and next_x == 8

    def gate_calc():
        a(f"v_mov_b32 v{vT[0]}, v{vZ}")
        a(f"v_permlane32_swap_b32 v{vZ}, v{vT[0]}")
        a(f"v_add_f32 v{vT[0]}, v{vZ}, v{vT[0]}")
        a(f"v_cvt_pk_bf16_f32 v{vT[0]}, v{vT[0]}, v{vT[0]}")
        a(f"v_lshlrev_b32 v{vT[0]}, 16, v{vT[0]}")
        a(f"v_mul_f32 v{vT[0]}, {hex(f2u(-LOG2E))}, v{vT[0]}")
        a(f"v_exp_f32 v{vT[0]}, v{vT[0]}")
        a(f"v_add_f32 v{vT[0]}, 1.0, v{vT[0]}")
        a(f"v_rcp_f32 v{vT[0]}, v{vT[0]}")
        a(f"v_cvt_pk_bf16_f32 v{vT[0]}, v{vT[0]}, v{vT[0]}")
        a(f"v_lshlrev_b32 v{vT[8]}, 16, v{vT[0]}")
        a(f"v_sub_f32 v{vT[0]}, 1.0, v{vT[8]}")
        a(f"v_cvt_pk_bf16_f32 v{vT[0]}, v{vT[0]}, v{vT[0]}")
        a(f"v_lshlrev_b32 v{vT[0]}, 16, v{vT[0]}")
        a(f"v_rcp_f32 v{vT[0]}, v{vT[0]}")
        a(f"v_min_f32 v{vT[9]}, {hex(f2u(1e38))}, v{vT[0]}")
        a(f"v_and_b32 v{vT[0]}, 31, v{vL}")
        a(f"v_lshlrev_b32 v{vT[0]}, 2, v{vT[0]}")
        a(f"s_lshl_b32 s{sT0}, s{sTB}, 2")
        a(f"s_add_u32 s{sT0}, s{sT0}, s{sTT}")
        a(f"s_lshl_b32 s{sT1}, s{sT0}, 7")
        a(f"s_add_u32 s{sT1}, s{sT1}, {GO}")
        a(f"buffer_store_dword v{vT[8]}, v{vT[0]}, s[{SW}:{SW+3}], s{sT1} offen")
    def x_epilogue():
        acc = vAcc + 64
        a(f"s_cmp_lt_u32 s{sCG}, 8")
        a(f"s_cselect_b32 s{sT2}, {hex(f2u(0.25*LOG2E))}, 1.0")
        for r in range(16):
            a(f"v_mul_f32 v{acc+r}, s{sT2}, v{acc+r}")
        for r in range(8):
            a(f"v_cvt_pk_bf16_f32 v{vXf[0]+r}, v{acc+2*r}, v{acc+2*r+1}")
        a(f"s_lshl_b32 s{sT1}, s{sCG}, 1")
        a(f"s_add_u32 s{sT1}, s{sT1}, s{sCH}")
        a(f"s_lshl_b32 s{sT1}, s{sT1}, 7")
        a(f"s_add_u32 s{sT1}, s{sT1}, s{sT0}")
        a(f"s_lshl_b32 s{sT1}, s{sT1}, 10")
        a(f"buffer_store_dwordx4 v[{vXf[0]}:{vXf[0]+3}], v{vGo}, s[{SW}:{SW+3}], s{sT1} offen")
        a(f"s_add_u32 s{sT1}, s{sT1}, 65536")
        a(f"buffer_store_dwordx4 v[{vXf[0]+4}:{vXf[0]+7}], v{vGo}, s[{SW}:{SW+3}], s{sT1} offen")

    mainloop(False)
    gate_calc()
    x_epilogue()
    c0 = -2.0*LOG2E*math.sqrt(2.0/math.pi)
    c1 = c0*0.044715
    sC0, sC1 = 57, 58
    a(f"s_mov_b32 s{sC0}, {hex(f2u(c0))}")
    a(f"s_mov_b32 s{sC1}, {hex(f2u(c1))}")
    a(f"v_mov_b32 v{vT[7]}, s{sC0}")
    a(f"s_mul_i32 s{sT1}, s{sT0}, 144")
    a(f"s_lshl_b32 s{sT2}, s{sCG}, 3")
    a(f"s_add_u32 s{sT1}, s{sT1}, s{sT2}")
    a(f"s_lshl_b32 s{sT2}, s{sCH}, 1")
    a(f"s_add_u32 s{sT1}, s{sT1}, s{sT2}")
    a(f"s_lshl_b32 s{sT1}, s{sT1}, 10")
    a(f"s_add_u32 s{sT1}, s{sT1}, {A2 + 32*1024}")
    for pair in range(2):
        G = vAcc + 32*pair; U = G + 16
        tmp = vWf[0]
        for half in range(2):
            rs = range(8*half, 8*half+8)
            for r in rs: a(f"v_mul_f32 v{tmp+r}, v{G+r}, v{G+r}")
            for r in rs: a(f"v_fma_f32 v{tmp+r}, v{tmp+r}, s{sC1}, v{vT[7]}")
            for r in rs: a(f"v_mul_f32 v{tmp+r}, v{tmp+r}, v{G+r}")
            for r in rs: a(f"v_exp_f32 v{tmp+r}, v{tmp+r}")
            for r in rs: a(f"v_mul_f32 v{U+r}, v{U+r}, v{G+r}")
            for r in rs: a(f"v_fma_f32 v{tmp+r}, v{tmp+r}, v{vT[9]}, v{vT[9]}")
            for r in rs: a(f"v_rcp_f32 v{tmp+r}, v{tmp+r}")
            for r in rs: a(f"v_mul_f32 v{U+r}, v{U+r}, v{tmp+r}")
            d = vXf[1] + 8*pair + 4*half
            for i in range(4):
                a(f"v_cvt_pk_bf16_f32 v{d+i}, v{U+8*half+2*i}, v{U+8*half+2*i+1}")
            off = (4*pair + half)*1024
            if off < 4096:
                a(f"buffer_store_dwordx4 v[{d}:{d+3}], v{vGo}, s[{SW}:{SW+3}], s{sT1} offen offset:{off}")
            else:
                a(f"s_add_u32 s{sT2}, s{sT1}, 4096")
                a(f"buffer_store_dwordx4 v[{d}:{d+3}], v{vGo}, s[{SW}:{SW+3}], s{sT2} offen offset:{off-4096}")
    a("s_endpgm")
    a.label("p1_typeB")
    a.hist = []
    mainloop(True)
    gate_calc()
    x_epilogue()
    a(f"v_bfe_u32 v{vT[0]}, v{vL}, 4, 1")
    a(f"v_lshlrev_b32 v{vT[0]}, 16, v{vT[0]}")
    a(f"v_lshrrev_b32 v{vT[1]}, 5, v{vL}")
    a(f"v_lshlrev_b32 v{vT[1]}, 8, v{vT[1]}")
    a(f"v_add_u32 v{vT[0]}, v{vT[0]}, v{vT[1]}")
    a(f"v_and_b32 v{vT[1]}, 15, v{vL}")
    a(f"v_lshlrev_b32 v{vT[1]}, 4, v{vT[1]}")
    a(f"v_add_u32 v{vT[0]}, v{vT[0]}, v{vT[1]}")
    a(f"s_sub_u32 s{sT1}, s{sCG}, 14")
    a(f"s_lshl_b32 s{sT1}, s{sT1}, 3")
    a(f"s_add_u32 s{sT1}, s{sT1}, s{sCH}")
    a(f"s_lshl_b32 s{sT1}, s{sT1}, 17")
    a(f"s_lshl_b32 s{sT2}, s{sT0}, 10")
    a(f"s_add_u32 s{sT1}, s{sT1}, s{sT2}")
    a(f"s_add_u32 s{sT1}, s{sT1}, {VF}")
    for u in range(4):
        acc = vAcc + 16*u
        d = vWf[0] + 8*u
        for r in range(8):
            a(f"v_cvt_pk_bf16_f32 v{d+r}, v{acc+2*r}, v{acc+2*r+1}")
        a(f"buffer_store_dwordx4 v[{d}:{d+3}], v{vT[0]}, s[{SW}:{SW+3}], s{sT1} offen")
        a(f"buffer_store_dwordx4 v[{d+4}:{d+7}], v{vT[0]}, s[{SW}:{SW+3}], s{sT1} offen offset:512")
        if u < 3:
            a(f"s_add_u32 s{sT1}, s{sT1}, {4*65536}")
    a.label("p1_end")
    a("s_endpgm")
    return descriptor(name, 184)

def k2(a):
    name = "attn_kernel"
    kernel_begin(a, name)
    SW = 16
    sW, sH, sTB, sT0, sT1, sT2, sKo, sVo, sM0w, sTile = 20, 21, 22, 23, 24, 25, 26, 27, 28, 29
    sMask = 30
    sCnt = 32
    vL, vO16, vKa, vVa, vG = 1, 2, 3, 4, 5
    vT = [6, 7, 8, 9, 10, 11]
    vQ = 12
    vC = 16
    vS = [32, 48]
    vP = 64
    vO = 72
    vK = [88, 92]
    vV = [96, 104]
    KB, VB = 0, 65536
    a("s_cmp_ge_u32 s2, 256")
    a("s_cbranch_scc1 attn_end")
    a("s_load_dwordx2 s[14:15], s[0:1], 80")
    a(f"v_lshrrev_b32 v{vT[0]}, 6, v0")
    a(f"v_and_b32 v{vL}, 63, v0")
    a(f"v_readfirstlane_b32 s{sW}, v{vT[0]}")
    a(f"s_and_b32 s{sT0}, s2, 7")
    a(f"s_lshl_b32 s{sT0}, s{sT0}, 2")
    a(f"s_bfe_u32 s{sT1}, s2, {3 | (2 << 16)}")
    a(f"s_add_u32 s{sH}, s{sT0}, s{sT1}")
    a(f"s_lshr_b32 s{sTB}, s2, 5")
    a(f"s_lshl_b32 s{sM0w}, s{sW}, 10")
    a(f"v_lshlrev_b32 v{vO16}, 4, v{vL}")
    a(f"s_lshl_b32 s{sTile}, s{sTB}, 3")
    a(f"s_add_u32 s{sTile}, s{sTile}, s{sW}")
    a(f"s_lshl_b32 s{sT0}, s{sH}, 16")
    a(f"s_add_u32 s{sKo}, s{sT0}, s{sM0w}")
    a(f"s_add_u32 s{sVo}, s{sKo}, {VF}")
    a(f"s_add_u32 s{sKo}, s{sKo}, {KF}")
    a(f"s_lshl_b32 s{sT1}, s{sTile}, 10")
    a(f"s_add_u32 s{sT1}, s{sT1}, s{sT0}")
    a(f"s_lshl_b32 s{sT2}, s{sTile}, 7")
    a(f"s_add_u32 s{sT2}, s{sT2}, {GO}")
    a(f"v_and_b32 v{vT[0]}, 31, v{vL}")
    a(f"v_lshlrev_b32 v{vT[0]}, 2, v{vT[0]}")
    a("s_waitcnt lgkmcnt(0)")
    srd(a, SW, 14, WS_BYTES)
    vm = Cnt(a, "vmcnt", 63)
    lg = Cnt(a, "lgkmcnt", 15)
    a(f"buffer_load_dwordx4 v[{vQ}:{vQ+3}], v{vO16}, s[{SW}:{SW+3}], s{sT1} offen"); vm.issue("Q")
    a(f"buffer_load_dword v{vG}, v{vT[0]}, s[{SW}:{SW+3}], s{sT2} offen"); vm.issue("G")
    for j in range(8):
        a(f"s_add_u32 m0, s{sM0w}, {KB + j*8192}")
        a(f"buffer_load_dwordx4 v{vO16}, s[{SW}:{SW+3}], s{sKo} offen lds"); vm.issue(("K", j))
        a(f"s_add_u32 m0, s{sM0w}, {VB + j*8192}")
        a(f"buffer_load_dwordx4 v{vO16}, s[{SW}:{SW+3}], s{sVo} offen lds"); vm.issue(("V", j))
        a(f"s_add_u32 s{sKo}, s{sKo}, 8192")
        a(f"s_add_u32 s{sVo}, s{sVo}, 8192")
    a(f"v_mov_b32 v{vKa}, v{vO16}")
    a(f"v_lshrrev_b32 v{vT[0]}, 5, v{vL}")
    a(f"v_lshlrev_b32 v{vT[0]}, 8, v{vT[0]}")
    a(f"v_and_b32 v{vT[1]}, 15, v{vL}")
    a(f"v_lshlrev_b32 v{vT[1]}, 4, v{vT[1]}")
    a(f"v_add_u32 v{vVa}, v{vT[0]}, v{vT[1]}")
    a(f"v_add_u32 v{vVa}, {VB}, v{vVa}")
    a(f"s_mov_b32 s{sMask}, 0xffff")
    a(f"s_mov_b32 s{sMask+1}, 0xffff")
    for b in range(2):
        for r in range(8):
            a(f"v_mov_b32 v{vV[b]+r}, 0x3f803f80")
    def rd_k(i):
        d = vK[i % 2]
        a(f"ds_read_b128 v[{d}:{d+3}], v{vKa} offset:{i*1024}"); lg.issue(("k", i))
    def rd_v(i):
        d = vV[i % 2]
        a(f"s_mov_b64 exec, s[{sMask}:{sMask+1}]")
        a(f"ds_read_b128 v[{d}:{d+3}], v{vVa} offset:{i*1024}"); lg.issue(("v", i, 0))
        a(f"ds_read_b128 v[{d+4}:{d+7}], v{vVa} offset:{i*1024+512}"); lg.issue(("v", i, 1))
        a(f"s_mov_b64 exec, -1")
    def qk(i, cin=None):
        d = vS[i % 2]; k = vK[i % 2]
        lg.wait(("k", i))
        cin = cin or f"v[{vC}:{vC+15}]"
        a(f"v_mfma_f32_32x32x16_bf16 v[{d}:{d+15}], v[{k}:{k+3}], v[{vQ}:{vQ+3}], {cin}")
    def rowmax(src, dst):
        a(f"v_max3_f32 v{vT[0]}, v{src}, v{src+1}, v{src+2}")
        a(f"v_max3_f32 v{vT[1]}, v{src+3}, v{src+4}, v{src+5}")
        a(f"v_max3_f32 v{vT[2]}, v{src+6}, v{src+7}, v{src+8}")
        a(f"v_max3_f32 v{vT[3]}, v{src+9}, v{src+10}, v{src+11}")
        a(f"v_max3_f32 v{vT[0]}, v{vT[0]}, v{src+12}, v{src+13}")
        a(f"v_max3_f32 v{vT[1]}, v{vT[1]}, v{src+14}, v{src+15}")
        a(f"v_max3_f32 v{vT[0]}, v{vT[0]}, v{vT[1]}, v{vT[2]}")
        a(f"v_max3_f32 v{dst}, v{vT[0]}, v{vT[3]}, v{dst}")
    def set_c(m):
        a(f"v_mov_b32 v{vT[1]}, v{m}")
        a(f"v_permlane32_swap_b32 v{m}, v{vT[1]}")
        a(f"v_max_f32 v{m}, v{m}, v{vT[1]}")
        for r in range(16):
            a(f"v_sub_f32 v{vC+r}, 0, v{m}")
    vm.wait(["Q", "G", ("K", 0), ("V", 0), ("K", 1), ("V", 1)])
    a("s_barrier")
    rd_k(0); rd_v(0); rd_k(1)
    qk(0, "0")
    a(f"v_mov_b32 v{vT[4]}, 0xff800000")
    rowmax(vS[0], vT[4])
    set_c(vT[4])
    qk(0)
    for i in range(64):
        if i % 8 == 7 and i < 56:
            j = i // 8 + 2
            if j < 8:
                vm.wait([("K", j), ("V", j)])
                a("s_barrier")
        if i + 1 < 64: qk(i+1)
        if i + 2 < 64: rd_k(i+2)
        if i + 1 < 64: rd_v(i+1)
        S = vS[i % 2]; V = vV[i % 2]
        for m in range(2):
            for r in range(8*m, 8*m+8):
                a(f"v_exp_f32 v{S+r}, v{S+r}")
            for r in range(4*m, 4*m+4):
                a(f"v_cvt_pk_bf16_f32 v{vP+r}, v{S+2*r}, v{S+2*r+1}")
            lg.wait(("v", i, m))
            cin = "0" if (i == 0 and m == 0) else f"v[{vO}:{vO+15}]"
            a(f"v_mfma_f32_32x32x16_bf16 v[{vO}:{vO+15}], v[{V+4*m}:{V+4*m+3}], v[{vP+4*m}:{vP+4*m+3}], {cin}")
    a.fence()
    a(f"v_max3_f32 v{vT[0]}, |v{vO}|, |v{vO+1}|, |v{vO+2}|")
    a(f"v_max3_f32 v{vT[1]}, |v{vO+3}|, |v{vO+4}|, |v{vO+5}|")
    a(f"v_max3_f32 v{vT[0]}, |v{vO+6}|, |v{vO+7}|, v{vT[0]}")
    a(f"v_max_f32 v{vT[0]}, v{vT[0]}, v{vT[1]}")
    a(f"v_cmp_gt_f32 vcc, {hex(f2u(2.0**40))}, v{vO+8}")
    a(f"v_cmp_gt_f32 s[{sT0+1}:{sT0+2}], {hex(f2u(1.0))}, v{vO+8}") if False else None
    a(f"s_mov_b32 s{sT2}, 0x7f800000")
    a(f"v_cmp_gt_f32 s[34:35], s{sT2}, v{vT[0]}")
    a(f"s_and_b64 vcc, vcc, s[34:35]")
    a(f"s_cmp_eq_u64 vcc, -1")
    a("s_cbranch_scc1 attn_fin")
    a(f"v_mov_b32 v{vT[4]}, 0xff800000")
    a(f"v_mov_b32 v{vT[5]}, v{vKa}")
    a(f"s_mov_b32 s{sCnt}, 64")
    a.fence()
    a.label("attn_slow1")
    a(f"ds_read_b128 v[{vK[0]}:{vK[0]+3}], v{vT[5]}")
    a(f"v_add_u32 v{vT[5]}, 1024, v{vT[5]}")
    a("s_waitcnt lgkmcnt(0)")
    a(f"v_mfma_f32_32x32x16_bf16 v[{vS[0]}:{vS[0]+15}], v[{vK[0]}:{vK[0]+3}], v[{vQ}:{vQ+3}], 0")
    rowmax(vS[0], vT[4])
    a(f"s_sub_u32 s{sCnt}, s{sCnt}, 1")
    a(f"s_cmp_lg_u32 s{sCnt}, 0")
    a.fence()
    a("s_cbranch_scc1 attn_slow1")
    set_c(vT[4])
    for r in range(16):
        a(f"v_mov_b32 v{vO+r}, 0")
    a(f"v_mov_b32 v{vT[5]}, v{vKa}")
    a(f"v_mov_b32 v{vT[4]}, v{vVa}")
    a(f"s_mov_b32 s{sCnt}, 64")
    a.fence()
    a.label("attn_slow2")
    a(f"ds_read_b128 v[{vK[0]}:{vK[0]+3}], v{vT[5]}")
    a(f"s_mov_b64 exec, s[{sMask}:{sMask+1}]")
    a(f"ds_read_b128 v[{vV[0]}:{vV[0]+3}], v{vT[4]}")
    a(f"ds_read_b128 v[{vV[0]+4}:{vV[0]+7}], v{vT[4]} offset:512")
    a(f"s_mov_b64 exec, -1")
    a(f"v_add_u32 v{vT[5]}, 1024, v{vT[5]}")
    a(f"v_add_u32 v{vT[4]}, 1024, v{vT[4]}")
    a("s_waitcnt lgkmcnt(0)")
    a(f"v_mfma_f32_32x32x16_bf16 v[{vS[0]}:{vS[0]+15}], v[{vK[0]}:{vK[0]+3}], v[{vQ}:{vQ+3}], v[{vC}:{vC+15}]")
    for r in range(16):
        a(f"v_exp_f32 v{vS[0]+r}, v{vS[0]+r}")
    for r in range(8):
        a(f"v_cvt_pk_bf16_f32 v{vP+r}, v{vS[0]+2*r}, v{vS[0]+2*r+1}")
    for m in range(2):
        a(f"v_mfma_f32_32x32x16_bf16 v[{vO}:{vO+15}], v[{vV[0]+4*m}:{vV[0]+4*m+3}], v[{vP+4*m}:{vP+4*m+3}], v[{vO}:{vO+15}]")
    a(f"s_sub_u32 s{sCnt}, s{sCnt}, 1")
    a(f"s_cmp_lg_u32 s{sCnt}, 0")
    a.fence()
    a("s_cbranch_scc1 attn_slow2")
    a.label("attn_fin")
    a(f"v_rcp_f32 v{vT[0]}, v{vO+8}")
    a(f"v_mul_f32 v{vT[0]}, v{vT[0]}, v{vG}")
    for r in range(8):
        a(f"v_mul_f32 v{vO+r}, v{vO+r}, v{vT[0]}")
    for r in range(4):
        a(f"v_cvt_pk_bf16_f32 v{vP+r}, v{vO+2*r}, v{vO+2*r+1}")
    a(f"s_mul_i32 s{sT1}, s{sTile}, 144")
    a(f"s_add_u32 s{sT1}, s{sT1}, s{sH}")
    a(f"s_lshl_b32 s{sT1}, s{sT1}, 10")
    a(f"s_add_u32 s{sT1}, s{sT1}, {A2}")
    a(f"buffer_store_dwordx4 v[{vP}:{vP+3}], v{vO16}, s[{SW}:{SW+3}], s{sT1} offen")
    a.label("attn_end")
    a("s_endpgm")
    return descriptor(name, 112)

def k3(a):
    name = "fin_kernel"
    kernel_begin(a, name)
    SW, SWO, SWD, SOUT = 16, 20, 24, 28
    sW, sT0, sT1, sT2, sA, sB, sTile, sLb, sWo, sAo = 32, 33, 34, 35, 36, 37, 38, 39, 40, 41
    vL, vO16, vWo = 1, 2, 3
    vWa = [4, 5]
    vT = [6, 7, 8, 9, 10, 11]
    vWf = [12, 20]
    vAcc = 28
    vAf = 92
    NS = 10
    a("s_cmp_ge_u32 s2, 256")
    a("s_cbranch_scc1 fin_end")
    a("s_load_dwordx2 s[4:5], s[0:1], 16")
    a("s_load_dwordx2 s[6:7], s[0:1], 48")
    a("s_load_dwordx2 s[8:9], s[0:1], 64")
    a("s_load_dwordx2 s[14:15], s[0:1], 80")
    a(f"v_lshrrev_b32 v{vT[0]}, 6, v0")
    a(f"v_and_b32 v{vL}, 63, v0")
    a(f"v_readfirstlane_b32 s{sW}, v{vT[0]}")
    a(f"s_and_b32 s{sT0}, s2, 7")
    a(f"s_bfe_u32 s{sA}, s2, {3 | (2 << 16)}")
    a(f"s_lshr_b32 s{sB}, s2, 5")
    a(f"s_lshl_b32 s{sTile}, s{sT0}, 3")
    a(f"s_lshl_b32 s{sT1}, s{sA}, 1")
    a(f"s_add_u32 s{sTile}, s{sTile}, s{sT1}")
    a(f"s_mul_i32 s{sLb}, s{sW}, {NS*2048}")
    a(f"v_lshlrev_b32 v{vO16}, 4, v{vL}")
    a(f"v_lshrrev_b32 v{vT[0]}, 3, v{vL}")
    a(f"v_lshlrev_b32 v{vT[0]}, 10, v{vT[0]}")
    a(f"v_and_b32 v{vT[1]}, 7, v{vL}")
    a(f"v_lshrrev_b32 v{vT[2]}, 2, v{vL}")
    a(f"v_and_b32 v{vT[2]}, 4, v{vT[2]}")
    a(f"v_xor_b32 v{vT[1]}, v{vT[1]}, v{vT[2]}")
    a(f"v_lshlrev_b32 v{vT[1]}, 4, v{vT[1]}")
    a(f"v_add_u32 v{vWo}, v{vT[0]}, v{vT[1]}")
    a(f"s_lshl_b32 s{sT1}, s{sB}, 7")
    a(f"v_add_u32 v{vWo}, s{sT1}, v{vWo}")
    a("s_waitcnt lgkmcnt(0)")
    srd(a, SW, 14, WS_BYTES)
    srd(a, SWO, 4, 512*1024)
    srd(a, SWD, 6, 1792*1024)
    srd(a, SOUT, 8, 2048*1024)
    vm = Cnt(a, "vmcnt", 63)
    lg = Cnt(a, "lgkmcnt", 15)
    def dma_w(j):
        S = SWD if j < 14 else SWO
        if j == 0:
            a(f"s_mul_i32 s{sWo}, s{sW}, {14*16*1024}")
        if j == 14:
            a(f"s_mul_i32 s{sWo}, s{sW}, {4*16*1024}")
        for i in range(2):
            a(f"s_add_u32 m0, s{sLb}, {(j % NS)*2048 + i*1024}")
            a(f"buffer_load_dwordx4 v{vWo}, s[{S}:{S+3}], s{sWo} offen lds"); vm.issue(("W", j, i))
            a(f"s_add_u32 s{sWo}, s{sWo}, 8192")
    def ld_a(j):
        if j == 0:
            a(f"s_mul_i32 s{sAo}, s{sTile}, 144")
            a(f"s_mul_i32 s{sT1}, s{sW}, 14")
            a(f"s_add_u32 s{sAo}, s{sAo}, s{sT1}")
            a(f"s_lshl_b32 s{sAo}, s{sAo}, 10")
            a(f"s_add_u32 s{sAo}, s{sAo}, {A2 + 32*1024}")
        if j == 14:
            a(f"s_mul_i32 s{sAo}, s{sTile}, 144")
            a(f"s_lshl_b32 s{sT1}, s{sW}, 2")
            a(f"s_add_u32 s{sAo}, s{sAo}, s{sT1}")
            a(f"s_lshl_b32 s{sAo}, s{sAo}, 10")
            a(f"s_add_u32 s{sAo}, s{sAo}, {A2}")
        d = vAf + 8*j
        a(f"buffer_load_dwordx4 v[{d}:{d+3}], v{vO16}, s[{SW}:{SW+3}], s{sAo} offen"); vm.issue(("A", j, 0))
        a(f"s_add_u32 s{sT1}, s{sAo}, {144*1024}")
        a(f"buffer_load_dwordx4 v[{d+4}:{d+7}], v{vO16}, s[{SW}:{SW+3}], s{sT1} offen"); vm.issue(("A", j, 1))
        a(f"s_add_u32 s{sAo}, s{sAo}, 1024")
    for j in range(NS):
        dma_w(j); ld_a(j)
    a(f"v_lshrrev_b32 v{vT[0]}, 5, v{vL}")
    a(f"v_lshlrev_b32 v{vT[0]}, 9, v{vT[0]}")
    a(f"v_bfe_u32 v{vT[1]}, v{vL}, 2, 2")
    a(f"v_lshlrev_b32 v{vT[1]}, 7, v{vT[1]}")
    a(f"v_add_u32 v{vT[0]}, v{vT[0]}, v{vT[1]}")
    a(f"v_bfe_u32 v{vT[1]}, v{vL}, 3, 1")
    a(f"v_lshlrev_b32 v{vT[1]}, 6, v{vT[1]}")
    a(f"v_add_u32 v{vT[0]}, v{vT[0]}, v{vT[1]}")
    a(f"v_bfe_u32 v{vT[1]}, v{vL}, 4, 1")
    a(f"v_lshlrev_b32 v{vT[1]}, 5, v{vT[1]}")
    a(f"v_add_u32 v{vT[0]}, v{vT[0]}, v{vT[1]}")
    a(f"v_and_b32 v{vT[1]}, 3, v{vL}")
    a(f"v_lshlrev_b32 v{vT[1]}, 3, v{vT[1]}")
    a(f"v_add_u32 v{vT[0]}, v{vT[0]}, v{vT[1]}")
    a(f"v_add_u32 v{vWa[0]}, s{sLb}, v{vT[0]}")
    a(f"v_xor_b32 v{vWa[1]}, 64, v{vWa[0]}")
    def rd_w(j):
        vm.wait([("W", j, 0), ("W", j, 1)])
        for ct in range(2):
            d = vWf[j % 2] + 4*ct
            off = (j % NS)*2048
            a(f"ds_read_b64_tr_b16 v[{d}:{d+1}], v{vWa[ct]} offset:{off}"); lg.issue(("w", j, ct, 0))
            a(f"ds_read_b64_tr_b16 v[{d+2}:{d+3}], v{vWa[ct]} offset:{off+1024}"); lg.issue(("w", j, ct))
    rd_w(0)
    for j in range(18):
        if j + 1 < 18: rd_w(j+1)
        lg.wait([("w", j, 0), ("w", j, 1)])
        if j + NS < 18:
            dma_w(j + NS); ld_a(j + NS)
        vm.wait([("A", j, 0), ("A", j, 1)])
        for tt in range(2):
            for ct in range(2):
                acc = vAcc + 16*(2*tt+ct)
                wf = vWf[j % 2] + 4*ct
                af = vAf + 8*j + 4*tt
                cin = "0" if j == 0 else f"v[{acc}:{acc+15}]"
                a(f"v_mfma_f32_32x32x16_bf16 v[{acc}:{acc+15}], v[{wf}:{wf+3}], v[{af}:{af+3}], {cin}")
    a("s_barrier")
    a(f"s_lshl_b32 s{sT0}, s{sW}, 14")
    a(f"v_add_u32 v{vT[0]}, s{sT0}, v{vO16}")
    for q in range(16):
        a(f"ds_write_b128 v{vT[0]}, v[{vAcc+4*q}:{vAcc+4*q+3}] offset:{q*1024}")
    a("s_waitcnt lgkmcnt(0)")
    a("s_barrier")
    a(f"s_lshl_b32 s{sT0}, s{sW}, 11")
    a(f"v_add_u32 v{vT[0]}, s{sT0}, v{vO16}")
    a(f"v_add_u32 v{vT[1]}, 65536, v{vT[0]}")
    for src in range(8):
        va = vT[0] if src < 4 else vT[1]
        for q in range(2):
            d = vAf + 8*src + 4*q
            a(f"ds_read_b128 v[{d}:{d+3}], v{va} offset:{(src%4)*16384 + q*1024}")
        if src == 6:
            a("s_waitcnt lgkmcnt(8)")
    a("s_waitcnt lgkmcnt(0)")
    for src in range(1, 8):
        for r in range(8):
            a(f"v_add_f32 v{vAf+r}, v{vAf+r}, v{vAf+8*src+r}")
    for r in range(4):
        a(f"v_cvt_pk_bf16_f32 v{vWf[0]+r}, v{vAf+2*r}, v{vAf+2*r+1}")
    a(f"v_permlane32_swap_b32 v{vWf[0]}, v{vWf[0]+2}")
    a(f"v_permlane32_swap_b32 v{vWf[0]+1}, v{vWf[0]+3}")
    a(f"v_and_b32 v{vT[0]}, 31, v{vL}")
    a(f"v_lshlrev_b32 v{vT[0]}, 10, v{vT[0]}")
    a(f"v_lshrrev_b32 v{vT[1]}, 5, v{vL}")
    a(f"v_lshlrev_b32 v{vT[1]}, 4, v{vT[1]}")
    a(f"v_add_u32 v{vT[0]}, v{vT[0]}, v{vT[1]}")
    a(f"s_lshr_b32 s{sT0}, s{sW}, 2")
    a(f"s_add_u32 s{sT0}, s{sT0}, s{sTile}")
    a(f"s_lshl_b32 s{sT0}, s{sT0}, 15")
    a(f"s_lshl_b32 s{sT1}, s{sB}, 7")
    a(f"s_add_u32 s{sT0}, s{sT0}, s{sT1}")
    a(f"s_and_b32 s{sT1}, s{sW}, 3")
    a(f"s_lshl_b32 s{sT1}, s{sT1}, 5")
    a(f"s_add_u32 s{sT0}, s{sT0}, s{sT1}")
    a(f"buffer_store_dwordx4 v[{vWf[0]}:{vWf[0]+3}], v{vT[0]}, s[{SOUT}:{SOUT+3}], s{sT0} offen")
    a.label("fin_end")
    a("s_endpgm")
    return descriptor(name, 236)

def main(out):
    a = Asm()
    hdr = """; gated_mix: MHA block + GEGLU FFN, mixed by a sigmoid gate. Generated by gen/gen1.py
; @launch kernel=p1_kernel grid=(256,1,1) block=(512,1,1) lds=163840
; @launch kernel=attn_kernel grid=(256,1,1) block=(512,1,1) lds=131072
; @launch kernel=fin_kernel grid=(256,1,1) block=(512,1,1) lds=163840
.amdgcn_target "amdgcn-amd-amdhsa--gfx950"
.text
"""
    d = []
    d.append(k1(a)); d.append(k2(a)); d.append(k3(a))
    s = hdr + a.text() + '.section .rodata,"a"\n' + "".join(".p2align 6\n" + x for x in d)
    open(out, "w").write(s)
    print("instructions:", a.count, "nop states:", a.nops, "bytes:", len(s))

if __name__ == "__main__":
    main(sys.argv[1] if len(sys.argv) > 1 else f"cdna_kernels/{NAME}.s")
```
